```python
import torch

def _softmax(x, axis=-1):
    return torch.softmax(x, dim=axis)

def _gelu(x):
    return torch.nn.functional.gelu(x, approximate='tanh')

def _silu(x):
    return torch.nn.functional.silu(x)

def _sigmoid(x):
    return torch.sigmoid(x)

def _layernorm(x, axis=-1, eps=1e-05):
    m = x.mean(dim=axis, keepdim=True)
    v = x.var(dim=axis, keepdim=True, unbiased=False)
    return (x - m) / torch.sqrt(v + eps)

def _scatter_add(tgt, idx, src, axis=0):
    return tgt.clone().index_add_(axis, idx, src)

def _segment_sum(src, seg, n):
    out = torch.zeros((n,) + src.shape[1:], dtype=src.dtype)
    return out.index_add_(0, seg, src)

def _pad(x, pw):
    flat = tuple((v for pair in reversed(pw) for v in pair))
    return torch.nn.functional.pad(x, flat)
kernel_name = 'adaLN_cond__ssm_conv_s4d__glu_gated_geglu__prompt'

def setup_inputs():

    _w = lambda a: (lambda t: t.to(torch.bfloat16) if t.is_floating_point() else t)(torch.as_tensor(a))

    def _A_setup():
        Bsz, L, D, N = (1, 2048, 512, 128)
        return {'u': _w((lambda *s: torch.randn(*s, dtype=torch.bfloat16) * 0.05)(Bsz, L, D)), 'log_A_real': _w((lambda *s: torch.randn(*s, dtype=torch.bfloat16) * 3.2)(D, N) * 0.5), 'A_imag': _w((lambda *s: torch.randn(*s, dtype=torch.bfloat16) * 0.1)(D, N) * 3.14), 'C_real': _w((lambda *s: torch.randn(*s, dtype=torch.bfloat16) * 0.2)(D, N) / N ** 0.5), 'C_imag': _w((lambda *s: torch.randn(*s, dtype=torch.bfloat16) * 0.2)(D, N) / N ** 0.5), 'log_dt': _w((lambda *s: torch.randn(*s, dtype=torch.bfloat16) * 0.1)(D) * 0.5 - 4.0), 'D_skip': _w((lambda *s: torch.randn(*s, dtype=torch.bfloat16) * 0.1)(D))}
    _A_in = _A_setup()

    def _B_setup():
        B, S, Dm, Df = (1, 2048, 512, 1792)
        return {'x': _w((lambda *s: torch.randn(*s, dtype=torch.bfloat16) * 0.05)(B, S, Dm)), 'w_gate': _w((lambda *s: torch.randn(*s, dtype=torch.bfloat16) * 1.6)(Dm, Df) * Dm ** (-0.5)), 'w_up': _w((lambda *s: torch.randn(*s, dtype=torch.bfloat16) * 1.6)(Dm, Df) * Dm ** (-0.5)), 'w_down': _w((lambda *s: torch.randn(*s, dtype=torch.bfloat16) * 1.6)(Df, Dm) * Df ** (-0.5))}
    _B_in = _B_setup()
    return {'A_u': _A_in['u'], 'A_log_A_real': _A_in['log_A_real'], 'A_A_imag': _A_in['A_imag'], 'A_C_real': _A_in['C_real'], 'A_C_imag': _A_in['C_imag'], 'A_log_dt': _A_in['log_dt'], 'A_D_skip': _A_in['D_skip'], 'B_x': _B_in['x'], 'B_w_gate': _B_in['w_gate'], 'B_w_up': _B_in['w_up'], 'B_w_down': _B_in['w_down'], 'c': _w((lambda *s: torch.randn(*s, dtype=torch.bfloat16) * 0.2)(1, 512) * 8.0), 'w_mod': _w((lambda *s: torch.randn(*s, dtype=torch.bfloat16) * 0.2)(512, 6 * 512) * 512 ** (-0.5) * 8.0)}

def reference(A_u, A_log_A_real, A_A_imag, A_C_real, A_C_imag, A_log_dt, A_D_skip, B_x, B_w_gate, B_w_up, B_w_down, c, w_mod):

    def _A_ref(u, log_A_real, A_imag, C_real, C_imag, log_dt, D_skip):
        L = u.shape[1]
        dt = torch.exp(log_dt)
        A = -torch.exp(log_A_real) + 1j * A_imag
        C = (C_real + 1j * C_imag) * dt[:, None]
        pos = (lambda x, dt: x.to(dt))(torch.arange(L), log_dt.dtype)
        P = torch.exp((A * dt[:, None])[:, :, None] * pos[None, None, :])
        K = 2.0 * torch.einsum('dn,dnl->dl', C, P).real
        L2 = 2 * L
        u_t = (lambda x, *d: x.permute(*d))(u, 0, 2, 1)
        Kf = (lambda x, *a, **k: torch.fft.rfft(x.float(), *a, **k))(K, L2)
        Uf = (lambda x, *a, **k: torch.fft.rfft(x.float(), *a, **k))(u_t, L2)
        y = (lambda x, *a, **k: torch.fft.irfft(x, *a, **k).to(torch.bfloat16))(Uf * Kf[None, :, :], L2)[:, :, :L]
        y = (lambda x, *d: x.permute(*d))(y, 0, 2, 1)
        return y + u * D_skip[None, None, :]

    def _B_ref(x, w_gate, w_up, w_down):
        g = torch.einsum('bsd,df->bsf', x, w_gate)
        u = torch.einsum('bsd,df->bsf', x, w_up)
        h = _gelu(g) * u
        return torch.einsum('bsf,fd->bsd', h, w_down)
    x = A_u
    mod = (_silu(c) @ w_mod).reshape(c.shape[0], 6, 1, -1)
    sa, ca, ga, sb, cb, gb = (mod[:, 0].clone(), mod[:, 1].clone(), mod[:, 2].clone(), mod[:, 3].clone(), mod[:, 4].clone(), mod[:, 5].clone())
    h = _layernorm(x, axis=-1) * (1 + ca) + sa
    x = x + ga * _A_ref(h, A_log_A_real, A_A_imag, A_C_real, A_C_imag, A_log_dt, A_D_skip)
    h = _layernorm(x, axis=-1) * (1 + cb) + sb
    x = x + gb * _B_ref(h, B_w_gate, B_w_up, B_w_down)
    return x
```

```python
import re

REG_RE = re.compile(r'^(-|\|)?(abs\()?([vas])(\d+)\)?\|?$')
RNG_RE = re.compile(r'^(-)?([vas])\[(\d+):(\d+)\]$')
TRANS = ('v_exp_f32','v_log_f32','v_rcp_f32','v_rsq_f32','v_sqrt_f32','v_sin_f32','v_cos_f32','v_rcp_iflag_f32')

def regs_of(tok):
    tok = tok.strip()
    m = REG_RE.match(tok)
    if m: return {(m.group(3), int(m.group(4)))}
    m = RNG_RE.match(tok)
    if m: return {(m.group(2), i) for i in range(int(m.group(3)), int(m.group(4))+1)}
    if tok == 'vcc': return {('s',106),('s',107)}
    if tok == 'vcc_lo': return {('s',106)}
    if tok == 'vcc_hi': return {('s',107)}
    if tok == 'exec': return {('s',126),('s',127)}
    if tok == 'm0': return {('s',124)}
    return set()

def split_ops(s):
    out=[]; depth=0; cur=''
    for ch in s:
        if ch in '[(': depth+=1
        if ch in '])': depth-=1
        if ch==',' and depth==0: out.append(cur.strip()); cur=''
        else: cur+=ch
    if cur.strip(): out.append(cur.strip())
    return out

class Ins:
    __slots__=('text','mn','kind','defs','uses','passes','A','B','C','D','dpp','lds','wide','sdwa','states','label','target')
    def __init__(self, text):
        self.text=text; self.label=None; self.target=None
        self.defs=set(); self.uses=set(); self.passes=0; self.A=self.B=self.C=self.D=set()
        self.dpp=False; self.lds=False; self.wide=False; self.sdwa=False; self.states=1
        t=text.split(';')[0].strip()
        if t.endswith(':'):
            self.kind='label'; self.label=t[:-1]; self.mn=''; self.states=0; return
        if t.startswith('.') or not t:
            self.kind='dir'; self.mn=''; self.states=0; return
        parts=t.split(None,1); mn=parts[0]; rest=parts[1] if len(parts)>1 else ''
        self.mn=mn
        ops=split_ops(rest)
        mods=''
        if ops:
            sp=ops[-1].split(None,1)
            if len(sp)>1: ops[-1]=sp[0]; mods=sp[1]
        R=[regs_of(o) for o in ops]
        if mn.startswith('v_mfma'):
            self.kind='mfma'; self.D,self.A,self.B,self.C=R[0],R[1],R[2],R[3]
            self.defs=R[0]; self.uses=R[1]|R[2]|R[3]
            self.passes = 8 if '32x32x16' in mn else 4 if '16x16x32' in mn else 16
        elif mn.startswith('v_'):
            self.kind='valu'
            self.dpp = '_dpp' in mn or 'row_' in mods or 'quad_perm' in mods
            self.sdwa = '_sdwa' in mn or ('op_sel' in mods and not mn.startswith('v_pk_'))
            if mn.startswith('v_permlane') and 'swap' in mn:
                self.defs=R[0]|R[1]; self.uses=R[0]|R[1]
            elif '_co_' in mn or mn.startswith('v_div_scale') or mn.startswith('v_mad_u64'):
                self.defs=R[0]|R[1]; self.uses=set().union(*R[2:]) if len(R)>2 else set()
            else:
                self.defs=R[0]; self.uses=set().union(*R[1:]) if len(R)>1 else set()
                if mn.startswith(('v_fmac','v_dot2c','v_writelane','v_pk_fmac')) or self.dpp or '_sdwa' in mn: self.uses=self.uses|R[0]
                if mn.startswith('v_cndmask') and len(ops)==3: self.uses|=regs_of('vcc')
                if mn.startswith('v_cmpx'): self.defs|=regs_of('exec')
        elif mn.startswith('ds_'):
            self.kind='ds'
            if mn.startswith(('ds_read','ds_bpermute','ds_permute','ds_swizzle')) or '_rtn' in mn:
                self.defs=R[0]; self.uses=set().union(*R[1:])
                if 'd16' in mn: self.uses=self.uses|R[0]
            else: self.uses=set().union(*R)
        elif mn.startswith(('buffer_','global_','flat_')):
            self.kind='vmem'
            islds = (' lds' in ' '+mods) or '_lds_' in mn
            self.lds=islds
            if 'load' in mn and not islds:
                self.defs=R[0]; self.uses=set().union(*R[1:])
                if 'd16' in mn: self.uses=self.uses|R[0]
            else:
                self.uses=set().union(*R) if R else set()
                if 'atomic' in mn and 'sc0' in mods: self.defs=R[0]
            if 'store' in mn and ('x4' in mn or 'x3' in mn):
                self.wide=True; self.D = R[0] if mn.startswith('buffer') else R[1]
        elif mn.startswith('s_'):
            self.kind='salu'
            if mn=='s_nop': self.states=int(ops[0],0)+1
            elif mn.startswith(('s_cbranch','s_branch')): self.kind='branch'; self.target=ops[0]
            elif mn.startswith(('s_cmp','s_waitcnt','s_barrier','s_endpgm','s_setprio','s_sleep','s_bitcmp')): self.uses=set().union(*R) if R else set()
            else:
                self.defs=R[0] if R else set(); self.uses=set().union(*R[1:]) if len(R)>1 else set()
                if 'saveexec' in mn: self.defs=self.defs|regs_of('exec')
        else:
            raise ValueError('unknown instr '+text)

def vec(rs): return {r for r in rs if r[0] in 'va'}
def sca(rs): return {r for r in rs if r[0]=='s'}

def need(p, c):
    n=0
    if p.kind=='valu':
        pv=vec(p.defs); ps=sca(p.defs)
        if c.kind=='mfma' and pv & c.uses: n=max(n,2)
        if c.kind=='valu':
            if re.sub(r'_e(32|64)$','',p.mn) in TRANS and (pv & (c.uses)) : n=max(n,1)
            if p.sdwa and pv & (c.uses|c.defs): n=max(n,1)
            if c.mn.startswith(('v_readlane','v_readfirstlane')) and pv & c.uses: n=max(n,1)
            if c.mn.startswith('v_permlane') and pv & c.uses: n=max(n,2)
            if c.dpp and pv & c.uses: n=max(n,2)
            if ps & sca(c.uses):
                n=max(n, 4 if c.mn.startswith(('v_readlane','v_writelane')) else 2)
            if ps & regs_of('exec'):
                n=max(n, 5 if c.dpp else 4 if c.mn.startswith(('v_readlane','v_readfirstlane','v_writelane','v_permlane')) else 0)
        if p.mn.startswith('v_dot') and c.kind in ('valu','mfma','ds','vmem') and pv & (c.uses|c.defs):
            same = c.mn==p.mn
            if not (same and not (pv & (c.uses - regs_of(split_ops(c.text.split(';')[0].split(None,1)[1])[-1].split()[0]) - (c.defs if 'dot2c' in c.mn else set())))): n=max(n,3)
        if c.kind=='mfma' and ps & regs_of('exec'): n=max(n,4)
        if c.kind in('vmem',) and ps & sca(c.uses): n=max(n,5)
        if c.kind in ('salu','branch') and ps & c.uses: n=max(n,1)
    elif p.kind=='mfma':
        P=p.passes
        full={4:8,8:12,16:20}[P]; ovl={4:6,8:10,16:18}[P]; war={4:3,8:7,16:15}[P]
        if c.kind=='mfma':
            if p.D & (c.A|c.B): n=max(n,full)
            if p.D & c.C and not (p.D==c.C and p.passes==c.passes): n=max(n,ovl)
            if p.D & c.D and not (p.D==c.C and p.passes==c.passes): n=max(n,ovl)
        elif c.kind in('valu','ds','vmem'):
            if p.D & (c.uses|c.defs): n=max(n,full)
            if c.kind=='valu' and p.C & c.defs: n=max(n,war)
            if c.kind in ('ds','vmem') and p.C & c.defs: n=max(n,war)
    elif p.kind=='salu':
        if ('s',124) in p.defs and ((c.kind=='vmem' and c.lds) or 'addtid' in c.mn): n=max(n,1)
    elif p.kind=='vmem' and p.wide:
        if p.D & c.defs: n=max(n, 2 if c.kind in('valu','mfma') else 1)
    return n

def fix_hazards(ins):
    W=24
    for it in range(10):
        incoming={}
        def walk(insert):
            out=[]; hist=[]; changed=False
            alive=True
            for c in ins:
                if c.kind=='label':
                    hs=[hist] if alive else []
                    hs+=incoming.get(c.label,[])
                    m={}
                    for h in hs:
                        for (p,a) in h:
                            if id(p) not in m or m[id(p)][1]>a: m[id(p)]=(p,a)
                    hist=list(m.values()); alive=True
                    out.append(c); continue
                if c.kind=='dir': out.append(c); continue
                req=0
                for (p,a) in hist:
                    k=need(p,c)
                    if k>a: req=max(req,k-a)
                if req>0 and insert:
                    r=req
                    while r>0:
                        k=min(r,16); nop=Ins(f's_nop {k-1}'); out.append(nop); r-=k
                    hist=[(p,a+req) for (p,a) in hist]; changed=True
                out.append(c)
                hist=[(p,a+c.states) for (p,a) in hist if a+c.states<W]
                if c.kind in('valu','mfma','salu','vmem'): hist.append((c,0))
                if c.kind=='branch':
                    newinc.setdefault(c.target,[]).append(list(hist))
                    if c.mn=='s_branch': alive=False; hist=[]
                if c.mn=='s_endpgm': alive=False; hist=[]
            return out,changed
        newinc={}
        walk(False); incoming=newinc; newinc={}
        walk(False); incoming=newinc; newinc={}
        ins,changed=walk(True)
        if not changed: return ins
    raise RuntimeError('hazard fix did not converge')

class Kern:
    def __init__(self, name, vgpr=256, agpr=0, sgpr=102):
        self.name=name; self.L=[]; self.vgpr=vgpr; self.agpr=agpr; self.sgpr=sgpr; self._lab=0
    def __call__(self, *texts):
        for t in texts:
            for line in t.split('\n'):
                line=line.strip()
                if line: self.L.append(Ins(line))
    def lab(self, base='L'):
        self._lab+=1; return f'{self.name}_{base}{self._lab}'
    def text(self):
        ins=fix_hazards(self.L)
        mv=max([r[1] for i in ins for r in (i.defs|i.uses) if r[0]=='v']+[0])+1
        ma=max([r[1]+1 for i in ins for r in (i.defs|i.uses) if r[0]=='a']+[0])
        ms=max([r[1] for i in ins for r in (i.defs|i.uses) if r[0]=='s' and r[1]<102]+[0])+1
        self.acc=(mv+3)//4*4; self.nfv=self.acc+ma if ma else mv; self.nsg=ms
        s=f'.globl {self.name}\n.p2align 8\n.type {self.name},@function\n{self.name}:\n'
        for i in ins: s+= (i.text if i.kind=='label' else '    '+i.text)+'\n'
        self.ninstr=sum(1 for i in ins if i.kind not in('label','dir'))
        return s
    def desc(self):
        return f'''.amdhsa_kernel {self.name}
  .amdhsa_next_free_vgpr {self.nfv}
  .amdhsa_next_free_sgpr {max(self.nsg,16)}
  .amdhsa_accum_offset {self.acc}
  .amdhsa_group_segment_fixed_size 0
  .amdhsa_kernarg_size 128
  .amdhsa_user_sgpr_count 2
  .amdhsa_user_sgpr_kernarg_segment_ptr 1
  .amdhsa_system_sgpr_workgroup_id_x 1
  .amdhsa_float_denorm_mode_32 3
.end_amdhsa_kernel
'''
```

```python
import sys
from asmdsl import Kern

MODP=0x0; ST1=0x18000; GBF=0x1C000; UP=0x20000
KREV=0x100000; XF=0x500000; WP=0x700000; WDP=0xA80000; HF=0xC40000; XP=0x1340000; WS_END=0x1540000
L2E=0x3fb8aa3b; L2E_LO=0x32a57060; LN2=0x3f317218

def load_ptrs(k):
    k('s_load_dwordx16 s[16:31], s[0:1], 0', 's_load_dwordx16 s[32:47], s[0:1], 64')
def srd(k, d, p, n):
    k(f's_mov_b32 s{d}, s{p}', f's_mov_b32 s{d+1}, s{p+1}', f's_mov_b32 s{d+2}, {n:#x}', f's_mov_b32 s{d+3}, 0x20000')
def rbf(k, d, s):
    k(f'v_cvt_pk_bf16_f32 v{d}, v{s}, v{s}', f'v_and_b32 v{d}, 0xffff0000, v{d}')
def cmul(k, y, x, e, t):
    k(f'v_pk_mul_f32 v[{t}:{t+1}], v[{x}:{x+1}], v[{e}:{e+1}] op_sel:[0,0] op_sel_hi:[1,0]',
      f'v_pk_fma_f32 v[{y}:{y+1}], v[{x}:{x+1}], v[{e}:{e+1}], v[{t}:{t+1}] op_sel:[1,1,0] op_sel_hi:[0,1,1] neg_lo:[0,1,0]')


import os
STAMPS = os.environ.get('STAMPS','0')=='1'
STAMP=0x1600000
def stamp(k, idx, kid=0):
    if not STAMPS: return
    k(f's_memtime s[{72+2*idx}:{73+2*idx}]')
    if idx==0: k('s_memrealtime s[70:71]')
def stamp_flush(k, n, kid, vt=(4,6)):
    if not STAMPS: return
    k('s_mov_b64 exec, -1', 's_waitcnt vmcnt(0) lgkmcnt(0)', f's_memtime s[{72+2*n}:{73+2*n}]', 's_memrealtime s[100:101]',
      's_mov_b32 s4, s46', 's_mov_b32 s5, s47', 's_mov_b32 s6, 0x2000000', 's_mov_b32 s7, 0x20000',
      's_lshl_b32 s3, s2, 7', f's_add_u32 s3, s3, {STAMP+kid*0x20000:#x}', 's_waitcnt lgkmcnt(0)', f'v_mov_b32 v{vt[1]}, 0')
    k(f'v_mov_b32 v{vt[0]}, s70', f'buffer_store_dword v{vt[0]}, v{vt[1]}, s[4:7], s3 offen offset:120')
    k(f'v_mov_b32 v{vt[0]+1}, s100', f'buffer_store_dword v{vt[0]+1}, v{vt[1]}, s[4:7], s3 offen offset:124')
    for i in range(n+1):
        k(f'v_mov_b32 v{vt[0]+(i&1)}, s{72+2*i}', f'buffer_store_dword v{vt[0]+(i&1)}, v{vt[1]}, s[4:7], s3 offen offset:{4*i}')

class VM:
    def __init__(self, k): self.k=k; self.n=0; self.tags={}
    def op(self, text, tag=None):
        self.k(text); self.n+=1
        if tag is not None: self.tags[tag]=self.n
    def wait(self, tag):
        N=self.n-self.tags[tag]
        if N<=62: self.k(f's_waitcnt vmcnt({N})')
```

```python
from gen_common import *
K1_LDS=33792
def k_prep():
    k=Kern('prep_kernel')
    Lmod,Lst,Lend=k.lab('mod'),k.lab('st'),k.lab('end')
    load_ptrs(k)
    k('s_cmp_ge_u32 s2, 832', f's_cbranch_scc1 {Lend}')
    k('s_cmp_ge_u32 s2, 704', f's_cbranch_scc1 {Lst}')
    k('s_cmp_ge_u32 s2, 512', f's_cbranch_scc1 {Lmod}')
    RS=528; TBL=53*RS+16
    k('s_lshl_b32 s3, s2, 8', 'v_lshl_add_u32 v1, v0, 1, s3', 's_lshl_b32 s4, s2, 1', 'v_mov_b32 v6, s4')
    k(f's_mov_b32 s50, {L2E:#x}', f's_mov_b32 s51, {L2E_LO:#x}', f's_mov_b32 s52, {LN2:#x}')
    k('s_waitcnt lgkmcnt(0)')
    k('global_load_ushort v7, v6, s[26:27]',
      'global_load_ushort v2, v1, s[18:19]', 'global_load_ushort v3, v1, s[20:21]',
      'global_load_ushort v4, v1, s[22:23]', 'global_load_ushort v5, v1, s[24:25]')
    srd(k, 8, 46, WS_END)
    k('v_and_b32 v60, 15, v0', 'v_bfe_u32 v61, v0, 4, 2', 'v_lshrrev_b32 v62, 6, v0')
    k('v_lshlrev_b32 v63, 2, v61', 'v_lshl_add_u32 v63, v62, 4, v63')
    k('v_mov_b32 v64, 2', 'v_bfe_u32 v65, v60, 1, 1', 'v_lshlrev_b32 v65, 6, v65', 'v_and_b32 v66, 1, v60',
      'v_add3_u32 v65, v65, v66, 0', 'v_add_u32 v65, 384, v65')
    k('v_cmp_gt_u32 vcc, 12, v60', 'v_add_u32 v66, 248, v60', 'v_cndmask_b32 v64, v64, 4, vcc', 'v_cndmask_b32 v65, v65, v66, vcc')
    k('v_cmp_gt_u32 vcc, 8, v60', 'v_cndmask_b32 v64, v64, 8, vcc', 'v_cndmask_b32 v65, v65, v60, vcc')
    k('v_mad_u32_u24 v65, v64, v63, v65', f'v_lshlrev_b32 v65, 1, v65', f'v_add_u32 v65, {TBL}, v65', 'v_lshlrev_b32 v64, 1, v64')
    k('v_add_u32 v66, v65, v64', 'v_add_u32 v67, v66, v64', 'v_add_u32 v68, v67, v64')
    k('v_min_u32 v69, 5, v60', 'v_lshl_add_u32 v69, v69, 5, v63', f'v_lshlrev_b32 v69, 1, v69', f'v_add_u32 v69, {TBL+1024}, v69')
    k('v_lshl_add_u32 v70, v62, 4, v60', f'v_mul_u32_u24 v70, {RS}, v70', 'v_lshl_add_u32 v70, v61, 4, v70')
    k(f'v_mul_u32_u24 v71, {RS}, v60', 'v_lshl_add_u32 v71, v61, 4, v71')
    k('v_lshlrev_b32 v72, 2, v0')
    k('v_lshlrev_b32 v73, 4, v0', 'v_sub_u32 v73, 2047, v73', 'v_cvt_f32_u32 v74, v73',
      'v_cmp_gt_u32 vcc, 256, v73', f'v_lshlrev_b32 v75, 1, v73', f'v_add_u32 v75, {TBL}, v75')
    for e in range(0,18,2):
        k(f'v_subrev_f32 v76, {float(e)}, v74' if e else 'v_mov_b32 v76, v74', f'v_subrev_f32 v77, {float(e+1)}, v74',
          'v_cvt_pk_bf16_f32 v78, v76, v77')
        k('v_and_b32 v76, 0xffff, v78', 'v_lshrrev_b32 v77, 16, v78')
        for (r,ee) in ((76,e),(77,e+1)):
            if ee>16: continue
            k(f'v_lshlrev_b32 v{r}, 1, v{r}', f'v_add_u32 v{r}, {TBL-34048}, v{r}', f'v_subrev_u32 v79, {2*ee}, v75',
              f'v_cndmask_b32 v{80+ee}, v{r}, v79, vcc')
    k('v_mov_b32 v76, 0', f'v_mov_b32 v77, {TBL-4}', 'ds_write_b32 v77, v76')
    def exp_bf(x, out, t, r):
        k(f'v_mul_f32 v{t}, s50, v{x}', f'v_fma_f32 v{r}, v{x}, s50, -v{t}', f'v_fma_f32 v{r}, v{x}, s51, v{r}',
          f'v_exp_f32 v{out}, v{t}', f'v_mul_f32 v{r}, s52, v{r}', f'v_fma_f32 v{out}, v{out}, v{r}, v{out}')
        rbf(k,out,out)
    k('s_waitcnt vmcnt(3)')
    k('v_lshlrev_b32 v7, 16, v7', 'v_lshlrev_b32 v2, 16, v2')
    exp_bf(7, 8, 10, 11)
    exp_bf(2, 9, 12, 13)
    k('s_waitcnt vmcnt(0)')
    k('v_lshlrev_b32 v3, 16, v3', 'v_lshlrev_b32 v4, 16, v4', 'v_lshlrev_b32 v5, 16, v5')
    k('v_mul_f32 v9, v9, v8', 'v_mul_f32 v3, v3, v8')
    k('v_mul_f32 v9, s50, v9', 'v_mul_f32 v3, 0.15915494, v3')
    k('v_mul_f32 v4, v4, v8', 'v_mul_f32 v5, v5, v8', 'v_add_f32 v20, v4, v4', 'v_add_f32 v21, v5, v5')
    def Ep(p, e):
        k(f'v_mul_f32 v10, {-float(p)}, v9', f'v_mul_f32 v11, {float(p)}, v3', 'v_exp_f32 v10, v10', 'v_fract_f32 v11, v11',
          'v_cos_f32 v12, v11', 'v_sin_f32 v13, v11', f'v_mul_f32 v{e}, v10, v12', f'v_mul_f32 v{e+1}, v10, v13')
    E1,E8,E256=22,24,26
    Ep(8,E8); Ep(1,E1); Ep(256,E256)
    def put(row, x, neg=False):
        k(f'v_cvt_pk_bf16_f32 v14, v{x}, {"-" if neg else ""}v{x+1}', f'ds_write_b32 v72, v14 offset:{row*RS}')
    Aops=[]; Bops=[]
    for a in range(32):
        Aops.append(lambda a=a: put(a,20,True))
        if a<31: Aops.append(lambda: cmul(k,20,20,E8,28))
    E={1:E1,2:32,3:34,4:36,5:34,6:38,7:34}
    Bops.append(lambda: (k('v_mov_b32 v14, 0x3f80'), k(f'ds_write_b32 v72, v14 offset:{32*RS}')))
    Bops.append(lambda: put(33,E1))
    for b in range(2,8):
        Bops.append(lambda b=b: cmul(k,E[b],E[b-1],E1,30)); Bops.append(lambda b=b: put(32+b,E[b]))
    Bops.append(lambda: put(40,E256))
    for i,b in enumerate((2,4,6)):
        Bops.append(lambda b=b: cmul(k,34,E256,E[b],30)); Bops.append(lambda i=i: put(41+i,34))
    Z=40
    Bops.append(lambda: cmul(k,Z,E256,E256,30)); Bops.append(lambda: put(44,Z))
    Bops.append(lambda: cmul(k,34,Z,E[4],30)); Bops.append(lambda: put(45,34))
    Bops.append(lambda: cmul(k,Z,Z,E256,30)); Bops.append(lambda: put(46,Z))
    Bops.append(lambda: cmul(k,34,Z,E[4],30)); Bops.append(lambda: put(47,34))
    for r in range(48,53):
        Bops.append(lambda: cmul(k,Z,Z,E256,30)); Bops.append(lambda r=r: put(r,Z))
    while Aops or Bops:
        for _ in range(2):
            if Aops: Aops.pop(0)()
        if Bops: Bops.pop(0)()
    k('s_waitcnt lgkmcnt(0)', 's_barrier')
    for s in range(8):
        b=100+12*s
        k(f'ds_read_b128 v[{b}:{b+3}], v70 offset:{64*s}', f'ds_read_b128 v[{b+4}:{b+7}], v71 offset:{32*RS+64*s}',
          f'ds_read_b128 v[{b+8}:{b+11}], v71 offset:{48*RS+64*s}')
        if s==4: k('s_waitcnt lgkmcnt(6)')
    for s in range(8):
        b=100+12*s
        if s>=3: k(f's_waitcnt lgkmcnt({3*(7-s)})')
        c0='0' if s==0 else 'v[44:47]'; c1='0' if s==0 else 'v[48:51]'
        k(f'v_mfma_f32_16x16x32_bf16 v[44:47], v[{b}:{b+3}], v[{b+4}:{b+7}], {c0}',
          f'v_mfma_f32_16x16x32_bf16 v[48:51], v[{b}:{b+3}], v[{b+8}:{b+11}], {c1}')
    k('v_cvt_pk_bf16_f32 v52, v44, v45', 'v_cvt_pk_bf16_f32 v53, v46, v47', 'v_cvt_pk_bf16_f32 v54, v48, v49', 'v_cvt_pk_bf16_f32 v55, v50, v51')
    k('ds_write_b16 v65, v52', 'ds_write_b16_d16_hi v66, v52', 'ds_write_b16 v67, v53', 'ds_write_b16_d16_hi v68, v53')
    k('ds_write_b16 v69, v54', 'ds_write_b16_d16_hi v69, v54 offset:2', 'ds_write_b16 v69, v55 offset:4', 'ds_write_b16_d16_hi v69, v55 offset:6')
    k('s_waitcnt lgkmcnt(0)', 's_barrier')
    for e in range(17):
        k(f'ds_read_u16 v{120+e}, v{80+e}')
    k('s_lshl_b32 s3, s2, 13', f's_add_u32 s3, s3, {KREV:#x}', 'v_lshlrev_b32 v1, 5, v0')
    k('s_waitcnt lgkmcnt(0)')
    for i in range(8): k(f'v_lshl_or_b32 v{100+i}, v{121+2*i}, 16, v{120+2*i}', f'v_lshl_or_b32 v{112+i}, v{122+2*i}, 16, v{121+2*i}')
    k('buffer_store_dwordx4 v[100:103], v1, s[8:11], s3 offen', 'buffer_store_dwordx4 v[104:107], v1, s[8:11], s3 offen offset:16')
    k('s_add_u32 s3, s3, 4096')
    k('buffer_store_dwordx4 v[112:115], v1, s[8:11], s3 offen', 'buffer_store_dwordx4 v[116:119], v1, s[8:11], s3 offen offset:16')
    k('s_endpgm')
    k(f'{Lmod}:')
    k('v_readfirstlane_b32 s5, v0', 's_sub_u32 s3, s2, 512', 's_lshl_b32 s3, s3, 1', 's_lshr_b32 s5, s5, 6', 's_add_u32 s3, s3, s5')
    k('s_mul_i32 s4, s3, 1366', 's_lshr_b32 s4, s4, 16', 's_mul_i32 s5, s4, 48', 's_sub_u32 s5, s3, s5')
    k('v_and_b32 v1, 63, v0', 'v_and_b32 v2, 7, v0', 'v_bfe_u32 v3, v0, 3, 3')
    k('s_lshl_b32 s6, s4, 7', 'v_lshl_add_u32 v4, v1, 1, s6')
    k('s_mul_i32 s6, s4, 393216', 's_lshl_b32 s7, s5, 7', 's_add_u32 s6, s6, s7')
    k('v_mul_u32_u24 v5, 6144, v3', 'v_lshl_add_u32 v5, v2, 4, v5', 'v_add_u32 v5, s6, v5')
    k('s_waitcnt lgkmcnt(0)')
    k('global_load_ushort v6, v4, s[38:39]')
    for i in range(8):
        k(f'global_load_dwordx4 v[{16+4*i}:{19+4*i}], v5, s[40:41]')
        if i<7: k(f'v_add_u32 v5, {8*6144}, v5')
    srd(k, 8, 46, WS_END)
    k('v_lshlrev_b32 v7, 2, v3')
    k('s_waitcnt vmcnt(8)')
    k('v_lshlrev_b32 v6, 16, v6', f'v_mul_f32 v8, {0xbfb8aa3b:#x}, v6', 'v_exp_f32 v8, v8', 'v_add_f32 v8, 1.0, v8', 'v_rcp_f32 v8, v8',
      'v_mul_f32 v8, v6, v8', 'v_cvt_pk_bf16_f32 v8, v8, v8')
    for i in range(8): k(f'ds_bpermute_b32 v{48+i}, v7, v8 offset:{32*i}')
    for j in range(8): k(f'v_mov_b32 v{8+j}, 0') if j else None
    k('s_waitcnt lgkmcnt(0)', 'v_mov_b32 v8, 0')
    for i in range(8):
        k(f'v_and_b32 v{56+i}, 0xffff, v{48+i}', f'v_and_b32 v{48+i}, 0xffff0000, v{48+i}')
    for i in range(8):
        k(f's_waitcnt vmcnt({7-i})')
        for j in range(4):
            k(f'v_dot2_f32_bf16 v{8+2*j}, v{16+4*i+j}, v{56+i}, v{8+2*j}', f'v_dot2_f32_bf16 v{9+2*j}, v{16+4*i+j}, v{48+i}, v{9+2*j}')
    k('s_nop 2')
    for j in range(4): k(f'v_permlane32_swap_b32 v{8+j}, v{12+j}')
    for j in range(4): k(f'v_add_f32 v{8+j}, v{8+j}, v{12+j}')
    for j in range(2): k(f'v_permlane16_swap_b32 v{8+j}, v{10+j}')
    for j in range(2): k(f'v_add_f32 v{8+j}, v{8+j}, v{10+j}')
    for j in range(2): k(f'v_add_f32_dpp v{10+j}, v{8+j}, v{8+j} row_ror:8 row_mask:0xf bank_mask:0xf')
    k('v_bfe_u32 v4, v1, 4, 2')
    k('v_lshlrev_b32 v5, 5, v2', 'v_lshl_add_u32 v5, v4, 3, v5')
    k('s_mul_i32 s6, s4, 12288', 's_lshl_b32 s7, s5, 8', 's_add_u32 s6, s6, s7')
    k('buffer_store_dwordx2 v[10:11], v5, s[8:11], s6 offen')
    k('s_endpgm')
    k(f'{Lst}:')
    k('s_sub_u32 s3, s2, 704', 's_lshl_b32 s3, s3, 4')
    k('v_lshrrev_b32 v1, 6, v0', 'v_bfe_u32 v2, v0, 4, 2', 'v_lshl_add_u32 v1, v1, 3, v2', 'v_add_u32 v1, s3, v1')
    k('v_and_b32 v2, 15, v0', 'v_lshlrev_b32 v3, 10, v1', 'v_lshl_add_u32 v3, v2, 4, v3', 'v_add_u32 v4, 4096, v3')
    k('s_mov_b32 s50, 0x3f803f80')
    k('v_mul_u32_u24 v14, 272, v2', 'v_subrev_u32 v15, s3, v1', 'v_lshl_add_u32 v14, v15, 2, v14')
    k('s_waitcnt lgkmcnt(0)')
    for r in range(2):
        for j in range(4): k(f'global_load_dwordx4 v[{16+16*r+4*j}:{19+16*r+4*j}], v{3+r}, s[16:17] offset:{256*j}')
    srd(k, 8, 46, WS_END)
    def red16(r):
        for sh in (8,4,2,1): k(f'v_add_f32_dpp v{r}, v{r}, v{r} row_ror:{sh} row_mask:0xf bank_mask:0xf')
    for r in range(2):
        b=16+16*r
        k(f's_waitcnt vmcnt({4-4*r})', 'v_mov_b32 v5, 0', 'v_mov_b32 v6, 0')
        for j in range(16): k(f'ds_write_b32 v14, v{b+j} offset:{(j>>2)*(64*64+16*16)+(j&3)*64+16*r}')
        for j in range(16): k(f'v_dot2_f32_bf16 v{5+(j&1)}, v{b+j}, s50, v{5+(j&1)}')
        k('s_nop 2', 'v_add_f32 v5, v5, v6'); red16(5)
        k(f'v_mul_f32 v5, {1/512.}, v5', 'v_mov_b32 v6, 0', 'v_mov_b32 v7, 0')
        for j in range(16):
            k(f'v_lshlrev_b32 v8, 16, v{b+j}', f'v_and_b32 v9, 0xffff0000, v{b+j}', 'v_sub_f32 v8, v8, v5', 'v_sub_f32 v9, v9, v5',
              'v_fmac_f32 v6, v8, v8', 'v_fmac_f32 v7, v9, v9')
        k('v_add_f32 v6, v6, v7'); red16(6)
        k(f'v_mul_f32 v6, {1/512.}, v6')
        rbf(k,6,6); k('v_add_f32 v6, 0x3727c5ac, v6'); rbf(k,6,6); k('v_sqrt_f32 v6, v6'); rbf(k,6,6)
        k(f'v_rcp_f32 v{11+2*r}, v6'); rbf(k,10+2*r,5)
    k('s_waitcnt lgkmcnt(0)', 's_barrier')
    k('v_lshrrev_b32 v5, 2, v0', 'v_and_b32 v6, 3, v0')
    k('v_lshrrev_b32 v7, 2, v5', 'v_lshlrev_b32 v7, 4, v7', 'v_lshl_add_u32 v7, v5, 6, v7', 'v_lshl_add_u32 v7, v6, 4, v7')
    for j in range(8): k(f'ds_read_b128 v[{16+4*j}:{19+4*j}], v7 offset:{j*(32*64+8*16)}')
    k('v_lshlrev_b32 v8, 13, v5', 'v_lshl_add_u32 v8, v6, 4, v8', 's_lshl_b32 s4, s3, 2', f's_add_u32 s4, s4, {XP:#x}')
    k('v_lshlrev_b32 v1, 3, v1', f's_mov_b32 s6, {ST1:#x}')
    for j in range(8):
        k(f's_waitcnt lgkmcnt({7-j})', f'buffer_store_dwordx4 v[{16+4*j}:{19+4*j}], v8, s[8:11], s4 offen')
        if j<7: k(f's_add_u32 s4, s4, {32*8192}')
    k('v_cmp_eq_u32 vcc, 0, v2', 's_and_saveexec_b64 s[4:5], vcc')
    k('buffer_store_dwordx2 v[10:11], v1, s[8:11], s6 offen', 'buffer_store_dwordx2 v[12:13], v1, s[8:11], s6 offen offset:32')
    k(f'{Lend}:', 's_endpgm')
    return k
```

```python
from gen_common import *
KS=4160
KR=0; H1=4*KS; XR=H1+9216; RED=XR+8192; K2_LDS=RED+32768
def unpack(k, d, s):
    k(f'v_lshlrev_b32 v{d}, 16, v{s}', f'v_and_b32 v{d+1}, 0xffff0000, v{s}')
def rb2(k, a, t):
    k(f'v_cvt_pk_bf16_f32 v{t}, v{a}, v{a+1}'); unpack(k,a,t)
def red8(k, r, t):
    k(f'v_add_f32_dpp v{r}, v{r}, v{r} quad_perm:[1,0,3,2] row_mask:0xf bank_mask:0xf',
      f'v_add_f32_dpp v{r}, v{r}, v{r} quad_perm:[2,3,0,1] row_mask:0xf bank_mask:0xf',
      f'v_add_f32_dpp v{r}, v{r}, v{r} row_half_mirror row_mask:0xf bank_mask:0xf')

def k_conv():
    k=Kern('conv_kernel')
    Lprep,Lend=k.lab('prep'),k.lab('end')
    load_ptrs(k)
    k('s_cmp_ge_u32 s2, 480', f's_cbranch_scc1 {Lend}')
    k('s_cmp_ge_u32 s2, 256', f's_cbranch_scc1 {Lprep}')
    k('s_and_b32 s3, s2, 7', 's_lshr_b32 s4, s2, 3', 's_lshl_b32 s48, s3, 6', 's_lshl_b32 s4, s4, 1', 's_add_u32 s48, s48, s4')
    k('s_lshl_b32 s50, s48, 1')
    k('v_lshlrev_b32 v1, 5, v0', 'v_lshlrev_b32 v3, 6, v0', 's_lshl_b32 s59, s48, 12', f's_add_u32 s59, s59, {XP:#x}')
    k('v_and_b32 v4, 63, v0', 'v_lshrrev_b32 v5, 6, v0', 'v_readfirstlane_b32 s51, v5')
    k('v_lshrrev_b32 v6, 4, v4', 'v_add_u32 v7, 1, v6', 'v_lshrrev_b32 v7, 2, v7', 'v_lshl_add_u32 v6, v7, 1, v6', 'v_lshlrev_b32 v6, 11, v6')
    k('v_and_b32 v7, 7, v4', 'v_mul_u32_u24 v7, 12288, v7', 'v_bfe_u32 v8, v4, 3, 1', 'v_add_u32 v8, s48, v8', 'v_lshl_add_u32 v6, v8, 2, v6', 'v_add_u32 v6, v6, v7')
    k('v_lshlrev_b32 v9, 4, v4')
    k(f's_mul_i32 s52, s51, {KS}', 's_lshl_b32 s53, s48, 13', 's_lshl_b32 s54, s51, 12', 's_add_u32 s53, s53, s54', f's_add_u32 s53, s53, {KREV:#x}')
    k(f's_mov_b32 s55, {ST1:#x}', 's_mov_b32 m0, s52')
    k('s_waitcnt lgkmcnt(0)')
    srd(k, 8, 46, WS_END)
    stamp(k,0,1)
    k('s_load_dword s49, s[28:29], s50')
    k('buffer_load_dword v40, v6, s[8:11], 0 offen')
    k('buffer_load_dwordx4 v[16:19], v1, s[8:11], s59 offen', 'buffer_load_dwordx4 v[20:23], v1, s[8:11], s59 offen offset:16')
    for j in range(4): k(f'buffer_load_dwordx4 v[{24+4*j}:{27+4*j}], v3, s[8:11], s55 offen offset:{16*j}')
    for i in range(4): k(f'buffer_load_dwordx4 v9, s[8:11], s53 offen offset:{1024*i} lds')
    k('v_mov_b32 v44, 0', 'v_mov_b32 v45, 0', 'v_mov_b32 v46, 0', 'v_mov_b32 v47, 0')
    k('v_lshrrev_b32 v10, 5, v0', 'v_mul_u32_u24 v10, 4608, v10', 'v_and_b32 v11, 31, v0', 'v_lshl_add_u32 v10, v11, 4, v10', f'v_add_u32 v10, {H1}, v10')
    k('v_bfe_u32 v11, v0, 1, 2', f'v_mul_u32_u24 v11, {KS}, v11', 'v_and_b32 v12, 1, v0', 'v_lshl_add_u32 v11, v12, 4, v11', f'v_add_u32 v11, {KR+4096}, v11')
    k('v_cmp_gt_u32 vcc, 64, v0', 'v_cndmask_b32 v10, v11, v10, vcc', 'v_cmp_gt_u32 vcc, 72, v0', 's_and_saveexec_b64 s[56:57], vcc')
    Lz=k.lab('z'); k(f's_cbranch_execz {Lz}', 'ds_write_b128 v10, v[44:47]', f'{Lz}:', 's_mov_b64 exec, s[56:57]')
    k('v_and_b32 v10, 15, v4', 'v_lshrrev_b32 v11, 4, v4')
    k('v_lshlrev_b32 v12, 3, v11', 'v_sub_u32 v12, v12, v10', 'v_add_u32 v12, 2031, v12', 'v_and_b32 v12, 0xfffffffe, v12', 'v_lshlrev_b32 v12, 1, v12')
    k('v_and_b32 v13, 1, v10', 'v_xor_b32 v13, 1, v13', f'v_mul_u32_u24 v13, {KS}, v13', 'v_add_u32 v12, v12, v13')
    k('s_lshr_b32 s56, s51, 1', 's_and_b32 s57, s51, 1', 's_lshl_b32 s57, s57, 8')
    k(f's_mul_i32 s58, s56, {2*KS}', 's_sub_u32 s58, s58, s57', f's_add_u32 s58, s58, {KR-3776}', 'v_add_u32 v12, s58, v12')
    k('v_mov_b32 v224, v12', 'v_add_u32 v225, 1024, v12', 'v_add_u32 v226, 2048, v12', 'v_add_u32 v227, 3072, v12')
    k('v_lshlrev_b32 v13, 5, v10', 'v_lshl_add_u32 v13, v11, 4, v13')
    k('s_mul_i32 s58, s56, 4608', 's_sub_u32 s58, s58, s57', f's_add_u32 s58, s58, {H1+480-192}', 'v_add_u32 v13, s58, v13')
    k('s_waitcnt vmcnt(10)')
    red8(k,40,41); rbf(k,40,40); k('v_add_f32 v41, 1.0, v40'); rbf(k,41,41)
    k('v_readlane_b32 s60, v40, 0', 'v_readlane_b32 s61, v40, 8', 'v_readlane_b32 s62, v41, 16', 'v_readlane_b32 s63, v41, 24',
      'v_readlane_b32 s64, v40, 32', 'v_readlane_b32 s65, v40, 40', 'v_readlane_b32 s66, v40, 48', 'v_readlane_b32 s67, v40, 56')
    k('s_waitcnt lgkmcnt(0)', 's_lshl_b32 s68, s49, 16', 's_and_b32 s69, s49, 0xffff0000')
    k('s_waitcnt vmcnt(4)')
    stamp(k,1,1)
    for e in range(8):
        a=48+2*e; m=24+2*e; t=42+(e&1)
        unpack(k,a,16+e)
        k(f'v_pk_add_f32 v[{a}:{a+1}], v[{a}:{a+1}], v[{m}:{m+1}] op_sel:[0,0] op_sel_hi:[1,0] neg_lo:[0,1] neg_hi:[0,1]'); rb2(k,a,t)
        k(f'v_pk_mul_f32 v[{a}:{a+1}], v[{a}:{a+1}], v[{m}:{m+1}] op_sel:[0,1] op_sel_hi:[1,1]'); rb2(k,a,t)
        k(f'v_pk_mul_f32 v[{a}:{a+1}], v[{a}:{a+1}], s[62:63]'); rb2(k,a,t)
        k(f'v_pk_add_f32 v[{a}:{a+1}], v[{a}:{a+1}], s[60:61]')
    for j in range(4):
        k(f'v_cvt_pk_bf16_f32 v{24+j}, v{48+4*j}, v{50+4*j}', f'v_cvt_pk_bf16_f32 v{28+j}, v{49+4*j}, v{51+4*j}')
    k('v_lshlrev_b32 v14, 4, v0', 'v_lshlrev_b32 v15, 5, v0')
    k(f'ds_write_b128 v14, v[24:27] offset:{H1+512}', f'ds_write_b128 v14, v[28:31] offset:{H1+4608+512}',
      f'ds_write_b128 v15, v[16:19] offset:{XR}', f'ds_write_b128 v15, v[20:23] offset:{XR+16}')
    k('v_mov_b32 v42, s66', 'v_mov_b32 v43, s67', 's_lshl_b32 s58, s48, 2', f's_add_u32 s58, s58, {GBF:#x}', 'v_mov_b32 v41, 0')
    k('v_cmp_eq_u32 vcc, 0, v0', 's_and_saveexec_b64 s[56:57], vcc')
    Lz=k.lab('g'); k(f's_cbranch_execz {Lz}', 'buffer_store_dwordx2 v[42:43], v41, s[8:11], s58 offen', f'{Lz}:', 's_mov_b64 exec, s[56:57]')
    for i in range(32): k(f'v_mov_b32 v{64+i}, 0')
    k('s_waitcnt vmcnt(0) lgkmcnt(0)', 's_barrier')
    stamp(k,2,1)
    def loads(rp):
        KB=96+64*(rp&1); HB=KB+32; L=[]
        for j in range(8):
            O=64*(59-rp-8*j); u=O>>10; o=(O&1023)//4
            L.append(f'ds_read2_b32 v[{KB+4*j}:{KB+4*j+1}], v{224+u} offset0:{o} offset1:{o+1}')
            L.append(f'ds_read2_b32 v[{KB+4*j+2}:{KB+4*j+3}], v{224+u} offset0:{o+2} offset1:{o+3}')
            L.append(f'ds_read_b128 v[{HB+4*j}:{HB+4*j+3}], v13 offset:{512*j+64*(3-rp)}')
        return L
    for x in loads(0): k(x)
    for rp in range(4):
        KB=96+64*(rp&1); HB=KB+32
        nxt=loads(rp+1) if rp<3 else []
        pairs=sorted([(j,m) for j in range(8) for m in range(8) if j+m<8], key=lambda p:(max(p),p))
        last=-1; issued=0
        for n,(j,m) in enumerate(pairs):
            if rp==0 and max(j,m)>last:
                last=max(j,m); k(f's_waitcnt lgkmcnt({min(15,21-3*last+issued)})')
            elif rp>0 and n==0: k('s_waitcnt lgkmcnt(0)')
            i=j+m
            k(f'v_mfma_f32_16x16x32_bf16 v[{64+4*i}:{67+4*i}], v[{KB+4*j}:{KB+4*j+3}], v[{HB+4*m}:{HB+4*m+3}], v[{64+4*i}:{67+4*i}]')
            if nxt and n>=2 and n%3!=0: k(nxt.pop(0)); issued+=1
        for x in nxt: k(x)
    stamp(k,3,1)
    k('s_lshl_b32 s58, s51, 13', f's_add_u32 s58, s58, {RED}', 'v_add_u32 v14, s58, v9')
    k('s_lshl_b32 s58, s51, 11', f's_add_u32 s58, s58, {RED}', 'v_add_u32 v15, s58, v9')
    k('v_lshlrev_b32 v16, 4, v10', 'v_lshl_add_u32 v16, v11, 2, v16', 's_lshl_b32 s58, s51, 9', 'v_add_u32 v16, s58, v16')
    k('v_lshlrev_b32 v17, 1, v16', 'v_lshlrev_b32 v18, 2, v16')
    k('v_lshrrev_b32 v19, 5, v16', 'v_lshlrev_b32 v19, 15, v19', 'v_and_b32 v20, 31, v16', 'v_lshl_add_u32 v19, v20, 2, v19', 'v_add_u32 v20, 0x40000, v19')
    k('s_lshl_b32 s58, s48, 6', f's_add_u32 s58, s58, {XF:#x}')
    for i in range(8): k(f'ds_write_b128 v14, v[{64+4*i}:{67+4*i}] offset:{1024*i}')
    for ti in range(2):
        b=96+64*ti
        k(f'ds_read_b64 v[{b+16}:{b+17}], v17 offset:{H1+512+512*ti}', f'ds_read_b64 v[{b+18}:{b+19}], v17 offset:{H1+4608+512+512*ti}',
          f'ds_read_b128 v[{b+20}:{b+23}], v18 offset:{XR+1024*ti}')
    k('s_waitcnt lgkmcnt(0)', 's_barrier')
    for ti in range(2):
        b=96+64*ti
        for w in range(4): k(f'ds_read_b128 v[{b+4*w}:{b+4*w+3}], v15 offset:{8192*w+1024*ti}')
    for ti in range(2):
        b=96+64*ti
        k(f's_waitcnt lgkmcnt({4-4*ti})')
        for io in range(4):
            y=b+24+8*io; h=y+2; x=y+4; t=y+6
            k(f'v_add_f32 v{y}, v{b+io}, v{b+4+io}', f'v_add_f32 v{y+1}, v{b+8+io}, v{b+12+io}')
            for ch in range(2):
                src=b+16+2*ch+(io>>1)
                k(f'v_and_b32 v{h+ch}, 0xffff0000, v{src}' if io&1 else f'v_lshlrev_b32 v{h+ch}, 16, v{src}')
            rb2(k,y,t)
            k(f'v_pk_mul_f32 v[{h}:{h+1}], v[{h}:{h+1}], s[68:69]'); rb2(k,h,t+1)
            k(f'v_pk_add_f32 v[{y}:{y+1}], v[{y}:{y+1}], v[{h}:{h+1}]'); rb2(k,y,t)
            k(f'v_pk_mul_f32 v[{y}:{y+1}], v[{y}:{y+1}], s[64:65]'); rb2(k,y,t)
            unpack(k,x,b+20+io)
            k(f'v_pk_add_f32 v[{y}:{y+1}], v[{y}:{y+1}], v[{x}:{x+1}]', f'v_cvt_pk_bf16_f32 v{b+56+io}, v{y}, v{y+1}')
        k(f'buffer_store_dwordx4 v[{b+56}:{b+59}], v{19+ti}, s[8:11], s58 offen')
    stamp(k,4,1)
    stamp_flush(k,5,1)
    k('s_endpgm')
    G=0; U=10368; GP=20736; DD=41472; SB=51712; S=160
    k(f'{Lprep}:')
    k('s_sub_u32 s3, s2, 256', 's_and_b32 s48, s3, 7', 's_lshr_b32 s49, s3, 3')
    k('v_lshrrev_b32 v1, 3, v0', 'v_and_b32 v2, 7, v0', 'v_and_b32 v4, 63, v0', 'v_lshrrev_b32 v5, 6, v0', 'v_readfirstlane_b32 s51, v5')
    k('s_lshl_b32 s50, s48, 6', 'v_add_u32 v3, s50, v1')
    k('v_mul_u32_u24 v6, 3584, v3', 'v_lshl_add_u32 v6, v2, 4, v6', 's_lshl_b32 s52, s49, 7', 'v_add_u32 v6, s52, v6', 'v_add_u32 v7, 114688, v6')
    k('s_lshl_b32 s52, s49, 16', 's_lshl_b32 s53, s48, 7', 's_add_u32 s52, s52, s53', 'v_lshlrev_b32 v8, 10, v1', 'v_lshl_add_u32 v8, v2, 4, v8', 'v_add_u32 v8, s52, v8', 'v_add_u32 v9, 32768, v8')
    k('v_mul_u32_u24 v10, 12288, v2', 'v_lshl_add_u32 v10, v3, 2, v10', f'v_add_u32 v10, {3*2048}, v10')
    k('s_waitcnt lgkmcnt(0)')
    srd(k, 8, 46, WS_END)
    stamp(k,0,1)
    k('buffer_load_dword v12, v10, s[8:11], 0 offen', 'buffer_load_dword v13, v10, s[8:11], 0 offen offset:128',
      'buffer_load_dword v14, v10, s[8:11], 0 offen offset:2048', 'buffer_load_dword v15, v10, s[8:11], 0 offen offset:2176')
    k('global_load_dwordx4 v[16:19], v6, s[32:33]', 'global_load_dwordx4 v[20:23], v7, s[32:33]',
      'global_load_dwordx4 v[24:27], v6, s[34:35]', 'global_load_dwordx4 v[28:31], v7, s[34:35]',
      'global_load_dwordx4 v[32:35], v8, s[36:37]', 'global_load_dwordx4 v[36:39], v9, s[36:37]')
    k(f'v_mul_u32_u24 v11, {S}, v1', 'v_lshl_add_u32 v11, v2, 4, v11')
    k('v_lshrrev_b32 v40, 4, v4', 'v_bfe_u32 v41, v4, 2, 2', 'v_and_b32 v42, 3, v4', 'v_and_b32 v43, 1, v40', 'v_lshrrev_b32 v44, 1, v40')
    k('v_lshl_add_u32 v45, v44, 3, v41', f'v_mul_u32_u24 v45, {S}, v45', f'v_mul_u32_u24 v46, {U}, v43', 'v_add_u32 v45, v45, v46',
      'v_lshl_add_u32 v45, v42, 3, v45', 's_lshl_b32 s52, s51, 5', 'v_add_u32 v45, s52, v45')
    k('v_lshl_add_u32 v46, v44, 2, v41', 's_lshl_b32 s52, s51, 4', 'v_add_u32 v46, s52, v46', f'v_mul_u32_u24 v46, {S}, v46',
      'v_and_b32 v47, 1, v42', 'v_lshl_add_u32 v46, v47, 5, v46', 'v_lshl_add_u32 v46, v43, 4, v46', 'v_lshrrev_b32 v47, 1, v42', 'v_lshl_add_u32 v46, v47, 3, v46')
    k('v_lshrrev_b32 v47, 5, v4', 'v_lshlrev_b32 v47, 4, v47')
    k('v_lshlrev_b32 v48, 4, v4')
    k('s_waitcnt vmcnt(6)')
    for r in (12,13,14,15): red8(k,r,0)
    for r in (12,13,14,15): rbf(k,r,r)
    for r in (14,15): k(f'v_add_f32 v{r}, 1.0, v{r}'); rbf(k,r,r)
    k('v_lshlrev_b32 v49, 1, v1')
    k(f'ds_write_b16_d16_hi v49, v12 offset:{SB}', f'ds_write_b16_d16_hi v49, v13 offset:{SB+64}')
    for n,(base,ps) in enumerate(((G,0),(G,1),(U,0),(U,1))):
        src=16+4*n; dst=52+4*n; c1=14+ps
        k(f's_waitcnt vmcnt({5-n})')
        k(f'ds_write_b128 v11, v[{src}:{src+3}] offset:{base+32*S*ps}')
        for j in range(4):
            unpack(k,50,src+j)
            k(f'v_mul_f32 v50, v{c1}, v50', f'v_mul_f32 v51, v{c1}, v51', f'v_cvt_pk_bf16_f32 v{dst+j}, v50, v51')
        k(f'ds_write_b128 v11, v[{dst}:{dst+3}] offset:{GP+base+32*S*ps}')
    k('s_waitcnt vmcnt(1)', f'ds_write_b128 v11, v[32:35] offset:{DD}', 's_waitcnt vmcnt(0)', f'ds_write_b128 v11, v[36:39] offset:{DD+32*S}')
    for j in range(4): k(f'v_mov_b32 v{68+j}, 0x3f803f80')
    k('s_waitcnt lgkmcnt(0)', 's_barrier')
    stamp(k,1,1); stamp(k,2,1); stamp(k,3,1); stamp(k,4,1)
    for s in range(4):
        k(f'ds_read_b64_tr_b16 v[{72+4*s}:{73+4*s}], v45 offset:{GP+16*s*S}', f'ds_read_b64_tr_b16 v[{74+4*s}:{75+4*s}], v45 offset:{GP+(16*s+4)*S}')
    for a in range(2):
        k(f'ds_read_b64_tr_b16 v[{120+4*a}:{121+4*a}], v46 offset:{DD+64*a}', f'ds_read_b64_tr_b16 v[{122+4*a}:{123+4*a}], v46 offset:{DD+64*a+8*S}')
    k('s_waitcnt lgkmcnt(0)')
    for s in range(4):
        k(f'ds_read_b64_tr_b16 v[{88+4*s}:{89+4*s}], v45 offset:{16*s*S}', f'ds_read_b64_tr_b16 v[{90+4*s}:{91+4*s}], v45 offset:{(16*s+4)*S}',
          f'ds_read_b128 v[{104+4*s}:{107+4*s}], v47 offset:{SB+32*s}')
    k('s_lshl_b32 s52, s49, 2', 's_add_u32 s52, s52, s51')
    k('s_lshl_b32 s53, s52, 15', 's_lshl_b32 s54, s48, 12', 's_add_u32 s53, s53, s54', f's_add_u32 s53, s53, {WP:#x}')
    for s in range(4): k(f'buffer_store_dwordx4 v[{72+4*s}:{75+4*s}], v48, s[8:11], s53 offen offset:{1024*s}')
    k('s_mul_i32 s54, s48, 224', 's_add_u32 s54, s54, s52', 's_lshl_b32 s54, s54, 10', f's_add_u32 s54, s54, {WDP:#x}', f's_add_u32 s55, s54, {112*1024}')
    k('buffer_store_dwordx4 v[120:123], v48, s[8:11], s54 offen', 'buffer_store_dwordx4 v[124:127], v48, s[8:11], s55 offen')
    for s in range(4):
        k(f'v_mfma_f32_32x32x16_bf16 v[128:143], v[{72+4*s}:{75+4*s}], v[68:71], {"0" if s==0 else "v[128:143]"}')
    k('s_waitcnt lgkmcnt(0)')
    for s in range(4):
        k(f'v_mfma_f32_32x32x16_bf16 v[144:159], v[{88+4*s}:{91+4*s}], v[{104+4*s}:{107+4*s}], {"0" if s==0 else "v[144:159]"}')
    k('s_mul_i32 s54, s48, 112', 's_add_u32 s54, s54, s52', 's_lshl_b32 s54, s54, 8', f's_add_u32 s54, s54, {UP:#x}')
    k('v_and_b32 v50, 31, v4', 'v_cmp_eq_u32 vcc, 0, v50', 's_and_saveexec_b64 s[56:57], vcc')
    for vec in range(2):
        for q in range(4):
            b=128+16*vec+4*q
            k(f'buffer_store_dwordx4 v[{b}:{b+3}], v47, s[8:11], s54 offen offset:{128*vec+32*q}')
    stamp_flush(k,5,1)
    k(f'{Lend}:', 's_endpgm')
    return k
```

```python
from gen_common import *
NS=8
UT=0; RING=2048; K3_LDS=RING+NS*16384
XB=128; ACC=(96,112); AB=64; NAB=8
import math
GK1=-2*math.sqrt(2/math.pi)*math.log2(math.e); GK2=GK1*0.044715
def f2u(x):
    import struct; return struct.unpack('<I',struct.pack('<f',x))[0]

def k_gemm1():
    k=Kern('gemm1_kernel'); vm=VM(k)
    Lend=k.lab('end')
    k('s_load_dwordx2 s[46:47], s[0:1], 120')
    k('s_cmp_ge_u32 s2, 256', f's_cbranch_scc1 {Lend}')
    k('s_and_b32 s3, s2, 7', 's_lshr_b32 s4, s2, 3')
    k('s_and_b32 s48, s3, 1', 's_lshl_b32 s48, s48, 3', 's_and_b32 s5, s4, 7', 's_add_u32 s48, s48, s5')
    k('s_lshr_b32 s49, s3, 1', 's_lshl_b32 s49, s49, 2', 's_lshr_b32 s5, s4, 3', 's_add_u32 s49, s49, s5')
    k('v_and_b32 v1, 63, v0', 'v_lshrrev_b32 v2, 6, v0', 'v_readfirstlane_b32 s51, v2', 'v_lshlrev_b32 v3, 4, v1')
    k('v_lshrrev_b32 v4, 5, v1', 'v_and_b32 v5, 31, v1', 'v_lshlrev_b32 v6, 9, v4', 'v_lshl_add_u32 v6, v5, 2, v6')
    k('v_lshlrev_b32 v7, 3, v0')
    k('s_lshl_b32 s52, s48, 2', 's_add_u32 s52, s52, s51')
    k('s_lshl_b32 s53, s52, 15', f's_add_u32 s53, s53, {XF:#x}')
    k(f's_mul_i32 s54, s49, {7*32768}', 's_lshl_b32 s55, s51, 12', 's_add_u32 s54, s54, s55', f's_add_u32 s54, s54, {WP:#x}')
    k('s_mul_i32 s56, s49, 1792', f's_add_u32 s56, s56, {UP:#x}')
    k('s_mul_i32 s57, s52, 112', 's_mul_i32 s58, s49, 7', 's_add_u32 s57, s57, s58', 's_lshl_b32 s57, s57, 10', f's_add_u32 s57, s57, {HF:#x}')
    k(f's_mov_b32 s60, {f2u(GK1):#x}', f's_mov_b32 s61, {f2u(GK2):#x}', 's_mov_b32 s62, 0x3f803f80')
    k('s_waitcnt lgkmcnt(0)')
    srd(k, 8, 46, WS_END)
    stamp(k,0)
    def dma(st):
        k(f's_add_u32 m0, s55, {RING+(st%NS)*16384}')
        k(f's_add_u32 s59, s54, {st*16384}')
        for f in range(4): vm.op(f'buffer_load_dwordx4 v3, s[8:11], s59 offen offset:{1024*f} lds', ('dma',st))
    def xload(s):
        for j in range(4):
            vm.op(f'buffer_load_dword v{XB+4*s+j}, v6, s[8:11], s53 offen offset:{(s&3)*1024+128*j}', ('x',s))
        if s&3==3: k('s_add_u32 s53, s53, 4096')
    dma(0)
    for s in range(4): xload(s)
    k('v_cmp_gt_u32 vcc, 224, v0', 's_and_saveexec_b64 s[64:65], vcc')
    for kb in range(8):
        vm.op(f'buffer_load_dwordx2 v[{16+2*kb}:{17+2*kb}], v7, s[8:11], s56 offen', 'up')
        if kb<7: k(f's_add_u32 s56, s56, {112*256}')
    k('s_mov_b64 exec, s[64:65]')
    for s in range(4,8): xload(s)
    dma(1)
    for s in range(8,10): xload(s)
    pend=[]
    for s in range(10,32):
        pend.append(('x',s))
        if s in (13,17,21,25,29,31): pend.append(('d',2+(13,17,21,25,29,31).index(s)))
    def issue_pending(n=1):
        for _ in range(n):
            if pend:
                kind,v=pend.pop(0)
                xload(v) if kind=='x' else dma(v)
    k('v_mov_b32 v8, 0', 'v_mov_b32 v9, 0', 'v_mov_b32 v10, 0', 'v_mov_b32 v11, 0')
    k('v_lshlrev_b32 v12, 4, v4', f'v_add_u32 v12, {UT}, v12')
    k(f'v_add_u32 v57, {RING}, v3', f'v_add_u32 v13, {RING+0x10000}, v3')
    vm.wait('up')
    for kb in range(1,8): k(f'v_add_f32 v16, v16, v{16+2*kb}', f'v_add_f32 v17, v17, v{17+2*kb}')
    k('s_and_b64 exec, exec, vcc', f'ds_write_b64 v7, v[16:17] offset:{UT}', 's_mov_b64 exec, s[64:65]')
    vm.wait(('dma',0)); k('s_waitcnt lgkmcnt(0)', 's_barrier')
    stamp(k,1)
    NF=224; PF=5
    def aread(n):
        st=n//16; f=n%16; slot=st%NS; b=AB+4*(n%NAB)
        off=slot*16384+f*1024
        k(f'ds_read_b128 v[{b}:{b+3}], v{57 if off<65536 else 13} offset:{off&0xffff}')
    ds_out=[]
    def dsop(text, tag): k(text); ds_out.append(tag)
    def dswait(tag):
        if tag in ds_out:
            i=ds_out.index(tag); N=len(ds_out)-1-i
            k(f's_waitcnt lgkmcnt({min(N,15)})'); del ds_out[:i+1]
    def aread_t(n): aread(n); ds_out.append(('a',n))
    def epi(q):
        A=ACC[q&1]; U1=16; U2=32; T=48; ops=[]
        for qq in range(4):
            ops.append(lambda qq=qq: dsop(f'ds_read_b128 v[{U1+4*qq}:{U1+4*qq+3}], v12 offset:{q*256+32*qq}', ('u',q,qq)))
            ops.append(lambda qq=qq: dsop(f'ds_read_b128 v[{U2+4*qq}:{U2+4*qq+3}], v12 offset:{q*256+128+32*qq}', ('v',q,qq)))
        for qq in (0,2,1,3):
            ops.append(lambda qq=qq: dswait(('v',q,qq)))
            for i in range(4):
                r=4*qq+i
                ops.append(lambda r=r: k(f'v_fma_f32 v{U2+r}, v14, v{U1+r}, v{U2+r}'))
                ops.append(lambda r=r: k(f'v_fma_f32 v{U2+r}, v15, v{A+r}, v{U2+r}'))
        for half in range(2):
            R=range(4*half,4*half+4)
            for r in R: ops.append(lambda r=r: k(f'v_mul_f32 v{U1+r}, v{U2+r}, v{U2+r}'))
            for r in R: ops.append(lambda r=r: k(f'v_fma_f32 v{U1+r}, v{U1+r}, s61, v{T+8}'))
            for r in R: ops.append(lambda r=r: k(f'v_mul_f32 v{U1+r}, v{U1+r}, v{U2+r}'))
            for r in R: ops.append(lambda r=r: k(f'v_exp_f32 v{U1+r}, v{U1+r}'))
            for r in R: ops.append(lambda r=r: k(f'v_mul_f32 v{U2+r}, v{U2+r}, v{U2+8+r}'))
            for r in R: ops.append(lambda r=r: k(f'v_add_f32 v{U1+r}, 1.0, v{U1+r}'))
            for r in R: ops.append(lambda r=r: k(f'v_rcp_f32 v{U1+r}, v{U1+r}'))
            for r in R: ops.append(lambda r=r: k(f'v_mul_f32 v{U2+r}, v{U2+r}, v{U1+r}'))
            for p in range(2): ops.append(lambda p=p,half=half: k(f'v_cvt_pk_bf16_f32 v{T+2*half+p}, v{U2+4*half+2*p}, v{U2+4*half+2*p+1}'))
        def st():
            vm.op(f'buffer_store_dwordx4 v[{T}:{T+3}], v3, s[8:11], s57 offen'); k('s_add_u32 s57, s57, 1024')
        ops.append(st)
        return ops
    k('v_mov_b32 v56, s60')
    for n in range(PF): aread_t(n)
    eops=[]
    for n in range(NF):
        q=n//32; s=n%32; st=n//16; f=n%16; b=AB+4*(n%NAB); A=ACC[q&1]
        if f==8 and st+1<14:
            vm.wait(('dma',st+1)); k('s_barrier')
            if st+7>=NS and st+7<14 and st>=1: dma(st+7)
        if n+PF<NF: aread_t(n+PF)
        if q==0: vm.wait(('x',s))
        dswait(('a',n))
        k(f'v_mfma_f32_32x32x16_bf16 v[{A}:{A+15}], v[{b}:{b+3}], v[{XB+4*s}:{XB+4*s+3}], {"0" if s==0 else f"v[{A}:{A+15}]"}')
        if q==0:
            issue_pending(1)
            for j in range(4):
                k(f'v_dot2_f32_bf16 v{8+(j&1)}, v{XB+4*s+j}, s62, v{8+(j&1)}', f'v_dot2_f32_bf16 v{10+(j&1)}, v{XB+4*s+j}, v{XB+4*s+j}, v{10+(j&1)}')
            if s==31:
                issue_pending(99)
                k('v_add_f32 v8, v8, v9', 'v_add_f32 v10, v10, v11', 'v_mov_b32 v9, v8', 'v_mov_b32 v11, v10')
                k('v_permlane32_swap_b32 v8, v9', 'v_permlane32_swap_b32 v10, v11', 'v_add_f32 v8, v8, v9', 'v_add_f32 v10, v10, v11')
                k(f'v_mul_f32 v8, {1/512.}, v8', f'v_mul_f32 v10, {1/512.}, v10', 'v_fma_f32 v10, -v8, v8, v10', 'v_max_f32 v10, 0, v10')
                rbf(k,10,10); k('v_add_f32 v10, 0x3727c5ac, v10'); rbf(k,10,10); k('v_sqrt_f32 v10, v10'); rbf(k,10,10)
                k('v_rcp_f32 v15, v10'); rbf(k,8,8); k('v_mul_f32 v14, -v8, v15')
                stamp(k,2)
        else:
            if s==1: eops=epi(q-1)
            if s>=1:
                nper=-(-len(eops)//(31-s)) if s<31 else len(eops)
                for _ in range(min(nper,len(eops))): eops.pop(0)()
    stamp(k,3)
    for o in epi(6): o()
    stamp(k,4)
    stamp_flush(k,5,2)
    k(f'{Lend}:', 's_endpgm')
    return k

K4_LDS=49152
def k_gemm2():
    k=Kern('gemm2_kernel'); vm=VM(k)
    Lend=k.lab('end')
    k('s_load_dwordx2 s[46:47], s[0:1], 120', 's_load_dwordx2 s[42:43], s[0:1], 104')
    k('s_cmp_ge_u32 s2, 256', f's_cbranch_scc1 {Lend}')
    k('s_and_b32 s3, s2, 7', 's_lshr_b32 s4, s2, 3', 's_lshl_b32 s48, s3, 2', 's_lshr_b32 s5, s4, 3', 's_add_u32 s48, s48, s5', 's_and_b32 s49, s4, 7')
    k('v_and_b32 v1, 63, v0', 'v_lshrrev_b32 v2, 6, v0', 'v_readfirstlane_b32 s51, v2', 'v_lshlrev_b32 v3, 4, v1')
    k('v_lshrrev_b32 v4, 5, v1', 'v_and_b32 v5, 31, v1')
    k('s_lshr_b32 s52, s51, 1', 's_and_b32 s53, s51, 1')
    k('s_lshl_b32 s54, s49, 1', 's_add_u32 s54, s54, s52', 's_xor_b32 s55, s54, 1')
    k('s_lshl_b32 s56, s48, 1', 's_add_u32 s56, s56, s53', 's_xor_b32 s57, s56, 1')
    k('s_mul_i32 s58, s51, 28')
    for (d,s,base) in ((60,54,WDP),(61,55,WDP),(62,56,HF),(63,57,HF)):
        k(f's_mul_i32 s{d}, s{s}, 112', f's_add_u32 s{d}, s{d}, s58', f's_lshl_b32 s{d}, s{d}, 10', f's_add_u32 s{d}, s{d}, {base:#x}')
    k('s_lshl_b32 s64, s56, 15', 's_lshl_b32 s65, s54, 11', 's_add_u32 s64, s64, s65', f's_add_u32 s64, s64, {XF:#x}')
    k('v_lshlrev_b32 v6, 10, v4', 'v_lshl_add_u32 v6, v5, 2, v6', 'v_lshlrev_b32 v7, 6, v4', 's_lshl_b32 s65, s54, 7', f's_add_u32 s65, s65, {GBF:#x}')
    k('v_lshlrev_b32 v8, 10, v5', 'v_lshl_add_u32 v8, v4, 5, v8', 's_lshl_b32 s66, s56, 15', 's_lshl_b32 s67, s54, 6', 's_add_u32 s66, s66, s67')
    k('s_waitcnt lgkmcnt(0)')
    srd(k, 8, 46, WS_END); srd(k, 12, 42, 2048*512*2)
    stamp(k,0)
    D=12; FB=64
    def fl(s):
        b=FB+16*(s%D)
        for n in range(4): vm.op(f'buffer_load_dwordx4 v[{b+4*n}:{b+4*n+3}], v3, s[8:11], s{60+n} offen offset:{(s&3)*1024}', ('f',s))
        if s&3==3:
            for n in range(4): k(f's_add_u32 s{60+n}, s{60+n}, 4096')
    for s in range(D-1): fl(s)
    for n in range(8): vm.op(f'buffer_load_dword v{16+n}, v6, s[8:11], s64 offen offset:{128*n}', 'x')
    for n in range(4): vm.op(f'buffer_load_dwordx4 v[{24+4*n}:{27+4*n}], v7, s[8:11], s65 offen offset:{16*n}', 'gb')
    for n in range(1,4):
        k(f's_xor_b32 s68, s51, {n}', 's_mul_i32 s68, s68, 12288', f's_add_u32 s68, s68, {(n-1)*4096}', f'v_add_u32 v{8+n}, s68, v3')
    k('s_mul_i32 s68, s51, 12288', 'v_add_u32 v12, s68, v3')
    for s in range(28):
        b=FB+16*(s%D)
        if s+D-1<28: fl(s+D-1)
        vm.wait(('f',s))
        if s==0: stamp(k,1)
        for n in range(4):
            a=n>>1; bb=n&1
            k(f'v_mfma_f32_32x32x16_bf16 a[{16*n}:{16*n+15}], v[{b+4*a}:{b+4*a+3}], v[{b+8+4*bb}:{b+8+4*bb+3}], {"0" if s==0 else f"a[{16*n}:{16*n+15}]"}')
    stamp(k,2)
    for n in range(1,4):
        for q in range(4): k(f'ds_write_b128 v{8+n}, a[{16*n+4*q}:{16*n+4*q+3}] offset:{1024*q}')
    for i in range(16): k(f'v_accvgpr_read_b32 v{40+i}, a{i}')
    k('s_waitcnt lgkmcnt(0)', 's_barrier')
    for n in range(3):
        for q in range(4): k(f'ds_read_b128 v[{64+16*n+4*q}:{64+16*n+4*q+3}], v12 offset:{4096*n+1024*q}')
    for n in range(3):
        k(f's_waitcnt lgkmcnt({8-4*n})')
        for i in range(16): k(f'v_add_f32 v{40+i}, v{40+i}, v{64+16*n+i}')
    stamp(k,3)
    for p in range(8):
        a=40+2*p
        k(f'v_cvt_pk_bf16_f32 v56, v{a}, v{a+1}', f'v_lshlrev_b32 v{a}, 16, v56', f'v_and_b32 v{a+1}, 0xffff0000, v56',
          f'v_pk_mul_f32 v[{a}:{a+1}], v[{a}:{a+1}], v[{24+2*p}:{25+2*p}]',
          f'v_cvt_pk_bf16_f32 v57, v{a}, v{a+1}', f'v_lshlrev_b32 v{a}, 16, v57', f'v_and_b32 v{a+1}, 0xffff0000, v57',
          f'v_lshlrev_b32 v58, 16, v{16+p}', f'v_and_b32 v59, 0xffff0000, v{16+p}',
          f'v_pk_add_f32 v[{a}:{a+1}], v[{a}:{a+1}], v[58:59]', f'v_cvt_pk_bf16_f32 v{64+p}, v{a}, v{a+1}')
    k('buffer_store_dwordx4 v[64:67], v8, s[12:15], s66 offen', 'buffer_store_dwordx4 v[68:71], v8, s[12:15], s66 offen offset:16')
    stamp(k,4)
    stamp_flush(k,5,3)
    k(f'{Lend}:', 's_endpgm')
    return k
```

```python
import sys, os
sys.path.insert(0, os.path.dirname(os.path.abspath(__file__)))
from gen_common import *
from k1 import *
from k2 import *
from k3 import *
HEADER = open('adaLN_cond__ssm_conv_s4d__glu_gated_geglu__prompt.s.ref').read().split('; Override launch')[0]
def build(kerns, path):
    s=HEADER
    for (k,grid,block,lds) in kerns: s+=f'; @launch kernel={k.name} grid=({grid},1,1) block=({block},1,1) lds={lds}\n'
    s+='.amdgcn_target "amdgcn-amd-amdhsa--gfx950"\n.text\n'
    for (k,_,_,_) in kerns: s+=k.text()
    s+='.section .rodata,"a"\n'
    for (k,_,_,_) in kerns: s+='.p2align 6\n'+k.desc()
    open(path,'w').write(s)
    for (k,_,_,_) in kerns: print(k.name,'instrs',k.ninstr,'vgpr',k.nfv,'acc',k.acc,'sgpr',k.nsg)


if __name__=='__main__':
    build([(k_prep(),832,128,K1_LDS),(k_conv(),480,256,K2_LDS),(k_gemm1(),256,256,K3_LDS),(k_gemm2(),256,256,K4_LDS)], 'ks.s' if STAMPS else 'k.s')
STAMP_SPECS=[(1,480,[('conv',0,256),('prep',256,480)],5),(2,256,[('gemm1',0,256)],5),(3,256,[('gemm2',0,256)],5)]
```
